```python
import torch

def _softmax(x, axis=-1):
    return torch.softmax(x, dim=axis)
def _gelu(x):
    return torch.nn.functional.gelu(x, approximate="tanh")
def _silu(x):
    return torch.nn.functional.silu(x)
def _sigmoid(x):
    return torch.sigmoid(x)
def _layernorm(x, axis=-1, eps=1e-5):
    m = x.mean(dim=axis, keepdim=True)
    v = x.var(dim=axis, keepdim=True, unbiased=False)
    return (x - m) / torch.sqrt(v + eps)
def _scatter_add(tgt, idx, src, axis=0):
    return tgt.clone().index_add_(axis, idx, src)
def _segment_sum(src, seg, n):
    out = torch.zeros((n,) + src.shape[1:], dtype=src.dtype)
    return out.index_add_(0, seg, src)
def _pad(x, pw):
    flat = tuple(v for pair in reversed(pw) for v in pair)
    return torch.nn.functional.pad(x, flat)

kernel_name = 'recurrent_scan__linear_kernel_hedgehog__dense_activation_gelu__prompt'

def setup_inputs():

    _w = (lambda a: (lambda t: t.to(torch.bfloat16) if t.is_floating_point() else t)(torch.as_tensor(a)))
    def _A_setup():
        B, S, D, H = 1, 2048, 576, 32
        Dh = D // H
        return {
            "x": _w((lambda *s: torch.randn(*s, dtype=torch.bfloat16) * 0.05)(B, S, D)),
            "wqkv": _w((lambda *s: torch.randn(*s, dtype=torch.bfloat16) * 0.4)(D, 3 * D)),
            "w_phi": _w((lambda *s: torch.randn(*s, dtype=torch.bfloat16) * 0.4)(H, Dh, Dh) * (Dh ** -0.5)),
            "wo": _w((lambda *s: torch.randn(*s, dtype=torch.bfloat16) * 0.2)(D, D)),
        }
    _A_in = _A_setup()

    def _B_setup():
        B, S, D, F = 1, 2048, 576, 4608
        return {
            "x": _w((lambda *s: torch.randn(*s, dtype=torch.bfloat16) * 0.05)(B, S, D)),
            "w1": _w((lambda *s: torch.randn(*s, dtype=torch.bfloat16) * 0.4)(D, F) * (D ** -0.5)),
            "b1": _w((lambda *s: torch.randn(*s, dtype=torch.bfloat16) * 12.8)(F) * 0.01),
            "w2": _w((lambda *s: torch.randn(*s, dtype=torch.bfloat16) * 0.1)(F, D) * (F ** -0.5)),
            "b2": _w((lambda *s: torch.randn(*s, dtype=torch.bfloat16) * 0.8)(D) * 0.01),
        }
    _B_in = _B_setup()

    return {
        "A_x": _A_in["x"],
        "A_wqkv": _A_in["wqkv"],
        "A_w_phi": _A_in["w_phi"],
        "A_wo": _A_in["wo"],
        "B_x": _B_in["x"],
        "B_w1": _B_in["w1"],
        "B_b1": _B_in["b1"],
        "B_w2": _B_in["w2"],
        "B_b2": _B_in["b2"],
    }

def reference(A_x, A_wqkv, A_w_phi, A_wo, B_x, B_w1, B_b1, B_w2, B_b2):
    def _A_ref(x, wqkv, w_phi, wo):
        B, S, D = x.shape
        H = 32; Dh = D // H
        qkv = (lambda x, *d: x.permute(*d))((x @ wqkv).reshape(B, S, 3, H, Dh), 2, 0, 3, 1, 4)
        q, k, v = qkv[0], qkv[1], qkv[2]
        pq = torch.einsum("bhsd,hdf->bhsf", q, w_phi)
        pk = torch.einsum("bhsd,hdf->bhsf", k, w_phi)
        phi_q = torch.concatenate([_softmax(pq, axis=-1), _softmax(-pq, axis=-1)], axis=-1)
        phi_k = torch.concatenate([_softmax(pk, axis=-1), _softmax(-pk, axis=-1)], axis=-1)
        kv = torch.einsum("bhsf,bhsd->bhfd", phi_k, v)
        z  = torch.einsum("bhsf->bhf", phi_k)
        num = torch.einsum("bhqf,bhfd->bhqd", phi_q, kv)
        den = torch.einsum("bhqf,bhf->bhq", phi_q, z)[..., None] + 1e-6
        o = num / den
        return (lambda x, *d: x.permute(*d))(o, 0, 2, 1, 3).reshape(B, S, D) @ wo

    def _B_ref(x, w1, b1, w2, b2):
        h = torch.einsum("bsd,df->bsf", x, w1) + b1
        h = _gelu(h)
        return torch.einsum("bsf,fd->bsd", h, w2) + b2

    x = A_x
    xn = _layernorm(x, axis=-1)
    s = _A_ref(xn, A_wqkv, A_w_phi, A_wo)
    g = _silu(_B_ref(xn, B_w1, B_b1, B_w2, B_b2))
    return x + s * g
```

```python
import sys
import struct
def fhex(x):
    return "0x%08x" % struct.unpack("<I", struct.pack("<f", x))[0]

KNAME = "recurrent_scan__linear_kernel_hedgehog__dense_activation_gelu__prompt"

ARG = dict(x=0, wqkv=8, wphi=16, wo=24, bx=32, w1=40, b1=48, w2=56, b2=64, out=72, dbg=80, ws=88)
WS_XN   = 0
WS_QKV  = 4 << 20
WS_H    = 16 << 20
WS_YP   = 48 << 20
WS_KV   = 80 << 20
WS_O    = 96 << 20
WS_SIZE = 268435456

S, D, F, H, DH = 2048, 576, 4608, 32, 18

DEBUG = False
class Asm:
    def __init__(self):
        self.lines = []
    def __call__(self, s):
        self.lines.append("    " + s)
    def label(self, s):
        self.lines.append(s + ":")
    def raw(self, s):
        self.lines.append(s)
    def text(self):
        return "\n".join(self.lines) + "\n"

def kernel_header(a, name):
    a.raw(f".globl {name}")
    a.raw(".p2align 8")
    a.raw(f".type {name},@function")
    a.label(name)

def kernel_desc(name, vgpr, sgpr=102, accum=None):
    if accum is None:
        accum = (vgpr + 3) // 4 * 4
    return f""".amdhsa_kernel {name}
  .amdhsa_next_free_vgpr {vgpr}
  .amdhsa_next_free_sgpr {sgpr}
  .amdhsa_accum_offset {accum}
  .amdhsa_group_segment_fixed_size 0
  .amdhsa_kernarg_size 96
  .amdhsa_user_sgpr_count 2
  .amdhsa_user_sgpr_kernarg_segment_ptr 1
  .amdhsa_system_sgpr_workgroup_id_x 1
.end_amdhsa_kernel
"""

def load_ptr(a, sreg, arg):
    a(f"s_load_dwordx2 s[{sreg}:{sreg+1}], s[0:1], {ARG[arg]}")

def make_srd(a, d, sptr, nbytes, off=0):
    if off:
        a(f"s_add_u32 s{d}, s{sptr}, {off}")
        a(f"s_addc_u32 s{d+1}, s{sptr+1}, 0")
    else:
        a(f"s_mov_b32 s{d}, s{sptr}")
        a(f"s_mov_b32 s{d+1}, s{sptr+1}")
    a(f"s_mov_b32 s{d+2}, {nbytes}")
    a(f"s_mov_b32 s{d+3}, 0x00020000")

def rne_bf16(a, v, tmp):
    a(f"v_cvt_pk_bf16_f32 v{tmp}, v{v}, v{v}")
    a(f"v_lshlrev_b32 v{v}, 16, v{tmp}")

def gen_ln(a, name):
    kernel_header(a, name)
    a("s_cmp_ge_u32 s2, 256")
    a(f"s_cbranch_scc1 L_{name}_end")
    load_ptr(a, 4, 'x')
    load_ptr(a, 6, 'ws')
    a("v_lshrrev_b32 v1, 5, v0")
    a("v_and_b32 v2, 31, v0")
    a("s_lshl_b32 s3, s2, 3")
    a("v_add_u32 v1, s3, v1               ; row")
    a("v_mul_u32_u24 v1, 1152, v1")
    a("v_mul_u32_u24 v2, 36, v2")
    a("v_add_u32 v1, v1, v2")
    a("s_waitcnt lgkmcnt(0)")
    make_srd(a, 8, 4, S*D*2)
    make_srd(a, 12, 6, S*D*2, WS_XN)
    a("buffer_load_dwordx4 v[4:7], v1, s[8:11], 0 offen")
    a("buffer_load_dwordx4 v[8:11], v1, s[8:11], 0 offen offset:16")
    a("buffer_load_dword v12, v1, s[8:11], 0 offen offset:32")
    a("s_waitcnt vmcnt(0)")
    for i in range(9):
        a(f"v_lshlrev_b32 v{16+2*i}, 16, v{4+i}")
        a(f"v_and_b32 v{17+2*i}, 0xffff0000, v{4+i}")
    a("v_add_f32 v40, v16, v17")
    for i in range(2, 18):
        a(f"v_add_f32 v40, v40, v{16+i}")
    def reduce32(v):
        for off in ("0x041F", "0x081F", "0x101F", "0x201F", "0x401F"):
            a(f"ds_swizzle_b32 v41, v{v} offset:{off}")
            a("s_waitcnt lgkmcnt(0)")
            a(f"v_add_f32 v{v}, v{v}, v41")
    reduce32(40)
    a("v_mul_f32 v40, 0x3ae38e39, v40")
    a("v_sub_f32 v42, v16, v40")
    a("v_mul_f32 v43, v42, v42")
    for i in range(1, 18):
        a(f"v_sub_f32 v42, v{16+i}, v40")
        a(f"v_fmac_f32 v43, v42, v42")
    reduce32(43)
    a("v_mul_f32 v43, 0x3ae38e39, v43      ; var")
    rne_bf16(a, 40, 44)
    rne_bf16(a, 43, 44)
    a("v_add_f32 v43, 0x3727c5ac, v43      ; + 1e-5")
    rne_bf16(a, 43, 44)
    a("v_sqrt_f32 v43, v43")
    a("s_nop 0")
    rne_bf16(a, 43, 44)
    a("v_rcp_f32 v45, v43")
    for i in range(18):
        a(f"v_sub_f32 v{16+i}, v{16+i}, v40")
    for i in range(9):
        a(f"v_cvt_pk_bf16_f32 v44, v{16+2*i}, v{17+2*i}")
        a(f"v_lshlrev_b32 v{16+2*i}, 16, v44")
        a(f"v_and_b32 v{17+2*i}, 0xffff0000, v44")
    for i in range(18):
        a(f"v_mul_f32 v{16+i}, v{16+i}, v45")
    for i in range(9):
        a(f"v_cvt_pk_bf16_f32 v{4+i}, v{16+2*i}, v{17+2*i}")
    a("buffer_store_dwordx4 v[4:7], v1, s[12:15], 0 offen")
    a("buffer_store_dwordx4 v[8:11], v1, s[12:15], 0 offen offset:16")
    a("buffer_store_dword v12, v1, s[12:15], 0 offen offset:32")
    a.label(f"L_{name}_end")
    a("s_endpgm")
    return kernel_desc(name, 48)

if __name__ == "__main__":
    pass

BN = 144
NT = BN // 16
LDS_BLK = 8*288 + 128
LDS_BUF = 8 * LDS_BLK
def ldsP(k):
    return (k >> 3) * LDS_BLK + (k & 7) * 288

def gen_gemm(a, name, *, nwg, ncb, nks, Kw, A, B, epi, BMw=2):
    MT = BMw
    BM = 64 * MT
    nst = Kw // 64
    L = f"L_{name}"
    kernel_header(a, name)
    a(f"s_cmp_ge_u32 s2, {nwg}")
    a(f"s_cbranch_scc1 {L}_end")
    load_ptr(a, 4, A[0])
    load_ptr(a, 6, B[0])
    load_ptr(a, 16, 'ws')
    nrb = S // BM
    import math
    lg = int(math.log2(nrb))
    a(f"s_and_b32 s20, s2, {nrb-1}          ; rb")
    a(f"s_lshr_b32 s21, s2, {lg}")
    if nks > 1:
        lc = int(math.log2(ncb))
        a(f"s_and_b32 s22, s21, {ncb-1}     ; cb")
        a(f"s_lshr_b32 s23, s21, {lc}       ; ks")
    else:
        a("s_mov_b32 s22, s21")
        a("s_mov_b32 s23, 0")
    a("v_and_b32 v1, 63, v0               ; lane")
    a("v_lshrrev_b32 v2, 6, v0            ; wave")
    a("v_and_b32 v3, 15, v1               ; l&15")
    a("v_lshrrev_b32 v4, 4, v1            ; l>>4")
    lda2 = A[2] * 2
    a(f"s_mul_i32 s24, s20, {BM}")
    a(f"v_mul_u32_u24 v5, {16*MT}, v2")
    a("v_add_u32 v5, v5, v3")
    a("v_add_u32 v5, s24, v5              ; row (i=0)")
    for i in range(MT):
        a(f"v_add_u32 v6, {16*i}, v5")
        a(f"s_mov_b32 s25, {lda2}")
        a(f"v_mul_lo_u32 v6, v6, s25")
        a(f"v_lshlrev_b32 v7, 4, v4")
        a(f"v_add_u32 v{10+i}, v6, v7")
    ldb2 = B[1] * 2
    for i in range(9):
        a(f"v_add_u32 v6, {i*256}, v0")
        a("s_mov_b32 s25, 0x71c71c8            ; ceil(2^32/36)")
        a("v_mul_hi_u32 v7, v6, s25           ; row")
        a("v_mul_u32_u24 v8, 36, v7")
        a("v_sub_u32 v8, v6, v8               ; col8")
        a(f"s_mov_b32 s25, {ldb2}")
        a("v_mul_lo_u32 v9, v7, s25")
        a(f"v_lshl_add_u32 v{12+i}, v8, 3, v9")
        a("v_lshrrev_b32 v9, 3, v7")
        a(f"v_mul_u32_u24 v9, {LDS_BLK}, v9")
        a("v_and_b32 v6, 7, v7")
        a("v_mul_u32_u24 v6, 288, v6")
        a("v_add_u32 v9, v9, v6")
        a(f"v_lshl_add_u32 v{21+i}, v8, 3, v9")
    a(f"v_mul_u32_u24 v30, {LDS_BLK}, v4")
    a("v_lshrrev_b32 v6, 2, v3")
    a("v_mul_u32_u24 v6, 288, v6")
    a("v_add_u32 v30, v30, v6")
    a("v_and_b32 v6, 3, v1")
    a("v_lshl_add_u32 v30, v6, 3, v30")
    a("s_waitcnt lgkmcnt(0)")
    make_srd(a, 8, 4, A[3], A[1])
    a(f"s_mul_i32 s26, s22, {BN*2}")
    a("s_add_u32 s12, s6, s26")
    a("s_addc_u32 s13, s7, 0")
    a(f"s_sub_u32 s14, {B[2]}, s26")
    a("s_mov_b32 s15, 0x00020000")
    a(f"s_mul_i32 s27, s23, {Kw*2}")
    a(f"s_mul_i32 s28, s23, {Kw*ldb2}")
    AF = lambda st, i, kk: 32 + st*16 + (i*2+kk)*4
    BS = lambda j: 64 + 2*j
    BF = lambda kk, j: 84 + kk*36 + j*4
    AC = lambda i, j: 156 + (i*9+j)*4
    for i in range(MT):
        for j in range(NT):
            for r in range(4):
                a(f"v_mov_b32 v{AC(i,j)+r}, 0")
    def loadB(s):
        a(f"s_add_u32 s29, s28, {64*s*ldb2}")
        for j in range(9):
            a(f"buffer_load_dwordx2 v[{BS(j)}:{BS(j)+1}], v{12+j}, s[12:15], s29 offen")
    def loadA(s):
        st = s & 1
        a(f"s_add_u32 s30, s27, {128*s}")
        for i in range(MT):
            for kk in range(2):
                a(f"buffer_load_dwordx4 v[{AF(st,i,kk)}:{AF(st,i,kk)+3}], v{10+i}, s[8:11], s30 offen offset:{64*kk}")
    def writeB(s):
        buf = (s & 1) * LDS_BUF
        for j in range(9):
            a(f"ds_write_b64 v{21+j}, v[{BS(j)}:{BS(j)+1}] offset:{buf}")
    loadB(0)
    loadA(0)
    a(f"s_waitcnt vmcnt({2*MT})")
    writeB(0)
    a("s_waitcnt lgkmcnt(0)")
    a("s_barrier")
    for s in range(nst):
        nxt = s + 1 < nst
        if nxt:
            loadB(s+1)
            loadA(s+1)
        buf = (s & 1) * LDS_BUF
        for kk in range(2):
            for j in range(NT):
                for hh in range(2):
                    off = buf + kk*4*LDS_BLK + hh*4*288 + 32*j
                    a(f"ds_read_b64_tr_b16 v[{BF(kk,j)+2*hh}:{BF(kk,j)+2*hh+1}], v30 offset:{off}")
        a(f"s_waitcnt vmcnt({9+2*MT if nxt else 0}) lgkmcnt(15)")
        a("s_waitcnt lgkmcnt(15)")
        for kk in range(2):
            if kk == 1:
                a("s_waitcnt lgkmcnt(0)")
            for j in range(NT):
                for i in range(MT):
                    a(f"v_mfma_f32_16x16x32_bf16 v[{AC(i,j)}:{AC(i,j)+3}], v[{BF(kk,j)}:{BF(kk,j)+3}], v[{AF(s&1,i,kk)}:{AF(s&1,i,kk)+3}], v[{AC(i,j)}:{AC(i,j)+3}]")
        if nxt:
            a(f"s_waitcnt vmcnt({2*MT})")
            writeB(s+1)
            a("s_waitcnt lgkmcnt(0)")
            a("s_barrier")
    a("s_nop 15")
    a("s_nop 3")
    epi(a, dict(AC=AC, MT=MT, BM=BM))
    a.label(f"{L}_end")
    a("s_endpgm")
    return kernel_desc(name, 232)

def epi_coords(a, ldc_bytes, ecol_bytes, c):
    a(f"s_mul_i32 s31, s22, {BN*ecol_bytes}")
    a(f"v_mul_u32_u24 v7, {4*ecol_bytes}, v4")
    a("v_add_u32 v7, s31, v7")
    a(f"s_mov_b32 s25, {ldc_bytes}")
    for i in range(c['MT']):
        a(f"v_add_u32 v6, {16*i}, v5")
        a(f"v_mul_lo_u32 v6, v6, s25")
        a(f"v_add_u32 v{60+i}, v6, v7")

def make_epi_bf16(ws_off, ldc, nbytes, gelu=False):
    def epi(a, c):
        AC = c['AC']
        make_srd(a, 32, 16, nbytes, ws_off)
        epi_coords(a, ldc*2, 2, c)
        if gelu:
            load_ptr(a, 36, 'b1')
            a(f"s_mul_i32 s31, s22, {BN*2}")
            a("v_lshlrev_b32 v8, 3, v4")
            a("s_waitcnt lgkmcnt(0)")
            make_srd(a, 40, 36, F*2)
            for j in range(NT):
                a(f"buffer_load_dwordx2 v[{64+2*j}:{65+2*j}], v8, s[40:43], s31 offen offset:{32*j}")
            a("s_waitcnt vmcnt(0)")
            a(f"s_mov_b32 s44, {fhex(-2*0.7978845608028654*1.4426950408889634)}")
            a(f"s_mov_b32 s45, {fhex(-2*0.7978845608028654*1.4426950408889634*0.044715)}")
        for i in range(c['MT']):
            for j in range(NT):
                r0 = AC(i, j)
                if gelu:
                    a(f"v_lshlrev_b32 v84, 16, v{64+2*j}")
                    a(f"v_and_b32 v85, 0xffff0000, v{64+2*j}")
                    a(f"v_lshlrev_b32 v86, 16, v{65+2*j}")
                    a(f"v_and_b32 v87, 0xffff0000, v{65+2*j}")
                    for r in range(4):
                        a(f"v_add_f32 v{r0+r}, v{r0+r}, v{84+r}")
                    for r in range(4):
                        a(f"v_mul_f32 v{88+r}, v{r0+r}, v{r0+r}")
                    for r in range(4):
                        a(f"v_mov_b32 v{92+r}, s44")
                    for r in range(4):
                        a(f"v_fmac_f32 v{92+r}, s45, v{88+r}")
                    for r in range(4):
                        a(f"v_mul_f32 v{92+r}, v{92+r}, v{r0+r}")
                    for r in range(4):
                        a(f"v_exp_f32 v{92+r}, v{92+r}")
                    for r in range(4):
                        a(f"v_add_f32 v{92+r}, 1.0, v{92+r}")
                    for r in range(4):
                        a(f"v_rcp_f32 v{92+r}, v{92+r}")
                    for r in range(4):
                        a(f"v_mul_f32 v{r0+r}, v{r0+r}, v{92+r}")
                a(f"v_cvt_pk_bf16_f32 v{r0}, v{r0}, v{r0+1}")
                a(f"v_cvt_pk_bf16_f32 v{r0+1}, v{r0+2}, v{r0+3}")
                a(f"buffer_store_dwordx2 v[{r0}:{r0+1}], v{60+i}, s[32:35], 0 offen offset:{32*j}")
    return epi

def make_epi_f32():
    def epi(a, c):
        AC = c['AC']
        a(f"s_mul_i32 s31, s23, {S*D*4}")
        a("s_add_u32 s36, s16, s31")
        a("s_addc_u32 s37, s17, 0")
        make_srd(a, 32, 36, S*D*4, WS_YP)
        epi_coords(a, D*4, 4, c)
        for i in range(c['MT']):
            for j in range(NT):
                r0 = AC(i, j)
                a(f"buffer_store_dwordx4 v[{r0}:{r0+3}], v{60+i}, s[32:35], 0 offen offset:{64*j}")
    return epi

def make_epi_final():
    def epi(a, c):
        AC = c['AC']
        load_ptr(a, 36, 'x')
        load_ptr(a, 38, 'out')
        load_ptr(a, 40, 'b2')
        make_srd(a, 32, 16, 4*S*D*4, WS_YP)
        epi_coords(a, D*2, 2, c)
        a(f"s_mul_i32 s31, s22, {BN*2}")
        a("v_lshlrev_b32 v8, 3, v4")
        a("s_waitcnt lgkmcnt(0)")
        make_srd(a, 44, 36, S*D*2)
        make_srd(a, 48, 38, S*D*2)
        make_srd(a, 52, 40, D*2)
        for j in range(NT):
            a(f"buffer_load_dwordx2 v[{64+2*j}:{65+2*j}], v8, s[52:55], s31 offen offset:{32*j}")
        for i in range(c['MT']):
            a(f"v_lshlrev_b32 v62, 1, v{60+i}      ; f32 offset")
            for j in range(NT):
                r0 = AC(i, j)
                for ks in range(4):
                    a(f"s_mov_b32 s56, {ks*S*D*4}")
                    a(f"buffer_load_dwordx4 v[{84+4*ks}:{87+4*ks}], v62, s[32:35], s56 offen offset:{64*j}")
                a(f"buffer_load_dwordx2 v[100:101], v{60+i}, s[44:47], 0 offen offset:{32*j}")
                a("s_waitcnt vmcnt(0)")
                for r in range(4):
                    a(f"v_add_f32 v{84+r}, v{84+r}, v{88+r}")
                    a(f"v_add_f32 v{92+r}, v{92+r}, v{96+r}")
                    a(f"v_add_f32 v{84+r}, v{84+r}, v{92+r}")
                a(f"v_lshlrev_b32 v88, 16, v{64+2*j}")
                a(f"v_and_b32 v89, 0xffff0000, v{64+2*j}")
                a(f"v_lshlrev_b32 v90, 16, v{65+2*j}")
                a(f"v_and_b32 v91, 0xffff0000, v{65+2*j}")
                for r in range(4):
                    a(f"v_add_f32 v{84+r}, v{84+r}, v{88+r}     ; y")
                for r in range(4):
                    a(f"v_mul_f32 v{88+r}, 0xbfb8aa3b, v{84+r}")
                for r in range(4):
                    a(f"v_exp_f32 v{88+r}, v{88+r}")
                for r in range(4):
                    a(f"v_add_f32 v{88+r}, 1.0, v{88+r}")
                for r in range(4):
                    a(f"v_rcp_f32 v{88+r}, v{88+r}")
                for r in range(4):
                    a(f"v_mul_f32 v{84+r}, v{84+r}, v{88+r}     ; g")
                a("v_lshlrev_b32 v88, 16, v100")
                a("v_and_b32 v89, 0xffff0000, v100")
                a("v_lshlrev_b32 v90, 16, v101")
                a("v_and_b32 v91, 0xffff0000, v101")
                for r in range(4):
                    a(f"v_fma_f32 v{r0+r}, v{r0+r}, v{84+r}, v{88+r}")
                a(f"v_cvt_pk_bf16_f32 v{r0}, v{r0}, v{r0+1}")
                a(f"v_cvt_pk_bf16_f32 v{r0+1}, v{r0+2}, v{r0+3}")
                a(f"buffer_store_dwordx2 v[{r0}:{r0+1}], v{60+i}, s[48:51], 0 offen offset:{32*j}")
    return epi


LOG2E = 1.4426950408889634

def emit_wphi_to_lds(a, sw=4):
    make_srd(a, 8, sw, H*DH*DH*2)
    a("s_mul_i32 s24, s20, 648")
    a("v_cmp_gt_u32 vcc, 162, v0")
    a("s_and_saveexec_b64 s[12:13], vcc")
    a("v_lshlrev_b32 v1, 2, v0")
    a("buffer_load_dword v2, v1, s[8:11], s24 offen")
    a("v_lshlrev_b32 v3, 1, v0            ; e = 2t")
    a("s_mov_b32 s25, 0xe38e38f           ; ceil(2^32/18)")
    a("v_mul_hi_u32 v4, v3, s25           ; d")
    a("v_mul_u32_u24 v5, 18, v4")
    a("v_sub_u32 v5, v3, v5               ; f")
    a("v_mul_u32_u24 v4, 80, v4")
    a("v_lshl_add_u32 v4, v5, 2, v4")
    a("s_waitcnt vmcnt(0)")
    a("v_lshlrev_b32 v6, 16, v2")
    a("v_and_b32 v7, 0xffff0000, v2")
    a("ds_write_b64 v4, v[6:7]")
    a("s_mov_b64 exec, s[12:13]")

def emit_featmap(a, vin, vp, vphi, vt):
    X = vt + 20
    for f in range(18):
        a(f"v_mov_b32 v{vp+f}, 0")
    for d in range(18):
        a(f"ds_read_b128 v[{vt}:{vt+3}], v9 offset:{80*d}")
        a(f"ds_read_b128 v[{vt+4}:{vt+7}], v9 offset:{80*d+16}")
        a(f"ds_read_b128 v[{vt+8}:{vt+11}], v9 offset:{80*d+32}")
        a(f"ds_read_b128 v[{vt+12}:{vt+15}], v9 offset:{80*d+48}")
        a(f"ds_read_b64 v[{vt+16}:{vt+17}], v9 offset:{80*d+64}")
        if d & 1:
            a(f"v_and_b32 v{X}, 0xffff0000, v{vin+d//2}")
        else:
            a(f"v_lshlrev_b32 v{X}, 16, v{vin+d//2}")
        a("s_waitcnt lgkmcnt(0)")
        for f in range(18):
            a(f"v_fmac_f32 v{vp+f}, v{X}, v{vt+f}")
    for f in range(18):
        a(f"v_cvt_pk_bf16_f32 v{vt}, v{vp+f}, v{vp+f}")
        a(f"v_lshlrev_b32 v{vp+f}, 16, v{vt}")
    a(f"v_max3_f32 v{vt}, v{vp}, v{vp+1}, v{vp+2}")
    a(f"v_min3_f32 v{vt+1}, v{vp}, v{vp+1}, v{vp+2}")
    for f in range(3, 17, 2):
        a(f"v_max3_f32 v{vt}, v{vt}, v{vp+f}, v{vp+f+1}")
        a(f"v_min3_f32 v{vt+1}, v{vt+1}, v{vp+f}, v{vp+f+1}")
    a(f"v_max_f32 v{vt}, v{vt}, v{vp+17}")
    a(f"v_min_f32 v{vt+1}, v{vt+1}, v{vp+17}")
    for f in range(18):
        a(f"v_sub_f32 v{vphi+f}, v{vp+f}, v{vt}")
        a(f"v_sub_f32 v{vphi+18+f}, v{vt+1}, v{vp+f}")
    for f in range(36):
        a(f"v_mul_f32 v{vphi+f}, {fhex(LOG2E)}, v{vphi+f}")
    for f in range(36):
        a(f"v_exp_f32 v{vphi+f}, v{vphi+f}")
    for half in range(2):
        b = vphi + 18*half
        a(f"v_add_f32 v{vt+2+half}, v{b}, v{b+1}")
        for f in range(2, 18):
            a(f"v_add_f32 v{vt+2+half}, v{vt+2+half}, v{b+f}")
        a(f"v_rcp_f32 v{vt+2+half}, v{vt+2+half}")
    a("s_nop 0")
    for half in range(2):
        b = vphi + 18*half
        for f in range(18):
            a(f"v_mul_f32 v{b+f}, v{b+f}, v{vt+2+half}")
    for f in range(36):
        a(f"v_cvt_pk_bf16_f32 v{vt}, v{vphi+f}, v{vphi+f}")
        a(f"v_lshlrev_b32 v{vphi+f}, 16, v{vt}")

PH_STR = 528
PH_OFF = 2048
VT_OFF = PH_OFF + 48*PH_STR
ATT1_LDS = VT_OFF + 32*PH_STR

def gen_attn1(a, name):
    L = f"L_{name}"
    kernel_header(a, name)
    a("s_cmp_ge_u32 s2, 256")
    a(f"s_cbranch_scc1 {L}_end")
    load_ptr(a, 4, 'wphi')
    load_ptr(a, 6, 'ws')
    a("s_and_b32 s20, s2, 31              ; head")
    a("s_lshr_b32 s21, s2, 5              ; chunk")
    a("s_waitcnt lgkmcnt(0)")
    emit_wphi_to_lds(a)
    make_srd(a, 12, 6, S*3*D*2, WS_QKV)
    a("s_lshl_b32 s24, s21, 8")
    a("v_add_u32 v1, s24, v0")
    a("s_mov_b32 s25, 3456")
    a("v_mul_lo_u32 v1, v1, s25")
    a("s_mul_i32 s26, s20, 36")
    a("s_add_u32 s26, s26, 1152")
    for i in range(9):
        a(f"buffer_load_dword v{16+i}, v1, s[12:15], s26 offen offset:{4*i}")
    for i in range(9):
        a(f"buffer_load_dword v{26+i}, v1, s[12:15], s26 offen offset:{1152+4*i}")
    a("v_mov_b32 v9, 0")
    a("s_waitcnt vmcnt(0) lgkmcnt(0)")
    a("s_barrier")
    emit_featmap(a, 16, 40, 60, 100)
    if DEBUG:
        make_srd(a, 16, 6, 256*256*144, 128<<20)
        a("s_mul_i32 s24, s2, 256*144")
        a("v_mul_u32_u24 v1, 144, v0")
        for f in range(36):
            a(f"buffer_store_dword v{60+f}, v1, s[16:19], s24 offen offset:{4*f}")
    a("v_lshlrev_b32 v1, 1, v0")
    for f in range(36):
        a(f"ds_write_b16_d16_hi v1, v{60+f} offset:{PH_OFF + f*PH_STR}")
    for i in range(9):
        a(f"ds_write_b16 v1, v{26+i} offset:{VT_OFF + (2*i)*PH_STR}")
        a(f"ds_write_b16_d16_hi v1, v{26+i} offset:{VT_OFF + (2*i+1)*PH_STR}")
    a("v_mov_b32 v2, 0x3f80")
    a(f"ds_write_b16 v1, v2 offset:{VT_OFF + 18*PH_STR}")
    a("s_waitcnt lgkmcnt(0)")
    a("s_barrier")
    a("v_and_b32 v1, 63, v0")
    a("v_lshrrev_b32 v2, 6, v0")
    a("v_and_b32 v3, 15, v1")
    a("v_lshrrev_b32 v4, 4, v1")
    a(f"v_mul_u32_u24 v5, {PH_STR}, v3")
    a("v_lshlrev_b32 v6, 7, v2            ; w*128 bytes")
    a("v_add_u32 v5, v5, v6")
    a("v_lshl_add_u32 v5, v4, 4, v5")
    for r in range(24):
        a(f"v_mov_b32 v{40+r}, 0")
    for kk in range(2):
        for ft in range(3):
            a(f"ds_read_b128 v[{64+4*ft}:{67+4*ft}], v5 offset:{PH_OFF + 16*ft*PH_STR + 64*kk}")
        for dt in range(2):
            a(f"ds_read_b128 v[{76+4*dt}:{79+4*dt}], v5 offset:{VT_OFF + 16*dt*PH_STR + 64*kk}")
        a("s_waitcnt lgkmcnt(0)")
        for ft in range(3):
            for dt in range(2):
                ac = 40 + (ft*2+dt)*4
                a(f"v_mfma_f32_16x16x32_bf16 v[{ac}:{ac+3}], v[{64+4*ft}:{67+4*ft}], v[{76+4*dt}:{79+4*dt}], v[{ac}:{ac+3}]")
    a("s_nop 15")
    a("s_barrier")
    a("v_lshlrev_b32 v5, 4, v1")
    a("v_mul_u32_u24 v6, 6144, v2")
    a("v_add_u32 v5, v5, v6")
    for tl in range(6):
        a(f"ds_write_b128 v5, v[{40+4*tl}:{43+4*tl}] offset:{PH_OFF + 1024*tl}")
    a("s_waitcnt lgkmcnt(0)")
    a("s_barrier")
    a("v_lshlrev_b32 v5, 2, v0")
    for q in range(6):
        for w in range(4):
            a(f"ds_read_b32 v{64+q*4+w}, v5 offset:{PH_OFF + 6144*w + 1024*q}")
    a("s_waitcnt lgkmcnt(0)")
    for q in range(6):
        a(f"v_add_f32 v{64+q*4}, v{64+q*4}, v{65+q*4}")
        a(f"v_add_f32 v{66+q*4}, v{66+q*4}, v{67+q*4}")
        a(f"v_add_f32 v{64+q*4}, v{64+q*4}, v{66+q*4}")
    make_srd(a, 16, 6, 256*6144, WS_KV)
    a("s_mul_i32 s24, s2, 6144")
    a("s_add_u32 s25, s24, 4096")
    for q in range(6):
        a(f"buffer_store_dword v{64+q*4}, v5, s[16:19], s{24 if q<4 else 25} offen offset:{1024*(q%4)}")
    a.label(f"{L}_end")
    a("s_endpgm")
    return kernel_desc(name, 128)

KV_OFF = 2048
ATT2_LDS = KV_OFF + 36*80

def gen_attn2(a, name):
    L = f"L_{name}"
    kernel_header(a, name)
    a("s_cmp_ge_u32 s2, 256")
    a(f"s_cbranch_scc1 {L}_end")
    load_ptr(a, 4, 'wphi')
    load_ptr(a, 6, 'ws')
    a("s_and_b32 s20, s2, 31              ; head")
    a("s_lshr_b32 s21, s2, 5              ; chunk")
    a("s_waitcnt lgkmcnt(0)")
    emit_wphi_to_lds(a)
    make_srd(a, 16, 6, 256*6144, WS_KV)
    a("v_lshlrev_b32 v1, 2, v0")
    for c in range(8):
        a(f"s_mul_i32 s24, s20, 6144")
        a(f"s_add_u32 s24, s24, {c*32*6144}")
        a("s_add_u32 s25, s24, 4096")
        for q in range(6):
            a(f"buffer_load_dword v{16+c*6+q}, v1, s[16:19], s{24 if q<4 else 25} offen offset:{1024*(q%4)}")
    a("s_waitcnt vmcnt(0)")
    for q in range(6):
        for c in range(1, 8):
            a(f"v_add_f32 v{16+q}, v{16+q}, v{16+c*6+q}")
        a(f"v_cvt_pk_bf16_f32 v2, v{16+q}, v{16+q}")
        a(f"v_lshlrev_b32 v{16+q}, 16, v2")
    a("v_lshrrev_b32 v2, 2, v0            ; lane")
    a("v_and_b32 v3, 3, v0                ; r")
    a("v_lshrrev_b32 v4, 4, v2")
    a("v_lshl_add_u32 v4, v4, 2, v3       ; f0 = 4*(lane>>4)+r")
    a("v_and_b32 v5, 15, v2               ; d0")
    for q in range(6):
        ft, dt = q // 2, q % 2
        a(f"v_add_u32 v6, {16*ft}, v4")
        a(f"v_add_u32 v7, {16*dt}, v5")
        a("v_cmp_gt_u32 vcc, 36, v6")
        a("v_cmp_gt_u32 s[12:13], 19, v7")
        a("s_and_b64 vcc, vcc, s[12:13]")
        a("s_and_saveexec_b64 s[12:13], vcc")
        a("v_mul_u32_u24 v6, 80, v6")
        a("v_lshl_add_u32 v6, v7, 2, v6")
        a(f"ds_write_b32 v6, v{16+q} offset:{KV_OFF}")
        a("s_mov_b64 exec, s[12:13]")
    make_srd(a, 12, 6, S*3*D*2, WS_QKV)
    a("s_lshl_b32 s24, s21, 8")
    a("v_add_u32 v1, s24, v0")
    a("s_mov_b32 s25, 3456")
    a("v_mul_lo_u32 v2, v1, s25")
    a("s_mul_i32 s26, s20, 36")
    for i in range(9):
        a(f"buffer_load_dword v{16+i}, v2, s[12:15], s26 offen offset:{4*i}")
    a("v_mov_b32 v9, 0")
    a("s_waitcnt vmcnt(0) lgkmcnt(0)")
    a("s_barrier")
    emit_featmap(a, 16, 40, 60, 100)
    for d in range(19):
        a(f"v_mov_b32 v{40+d}, 0")
    for f in range(36):
        o = KV_OFF + 80*f
        a(f"ds_read_b128 v[100:103], v9 offset:{o}")
        a(f"ds_read_b128 v[104:107], v9 offset:{o+16}")
        a(f"ds_read_b128 v[108:111], v9 offset:{o+32}")
        a(f"ds_read_b128 v[112:115], v9 offset:{o+48}")
        a(f"ds_read_b96 v[116:118], v9 offset:{o+64}")
        a("s_waitcnt lgkmcnt(0)")
        for d in range(19):
            a(f"v_fmac_f32 v{40+d}, v{60+f}, v{100+d}")
    a(f"v_add_f32 v58, {fhex(1e-6)}, v58")
    a("v_rcp_f32 v58, v58")
    a("s_nop 0")
    for d in range(18):
        a(f"v_mul_f32 v{40+d}, v{40+d}, v58")
    for i in range(9):
        a(f"v_cvt_pk_bf16_f32 v{16+i}, v{40+2*i}, v{41+2*i}")
    make_srd(a, 16, 6, S*D*2, WS_O)
    a("s_mov_b32 s25, 1152")
    a("v_mul_lo_u32 v2, v1, s25")
    for i in range(9):
        a(f"buffer_store_dword v{16+i}, v2, s[16:19], s26 offen offset:{4*i}")
    a.label(f"{L}_end")
    a("s_endpgm")
    return kernel_desc(name, 128)

def build():
    a = Asm()
    launches = []
    descs = []
    def add(name, gen, grid, lds=0, **kw):
        launches.append(f"; @launch kernel={name} grid=({grid},1,1) block=(256,1,1) lds={lds}")
        descs.append(gen(a, name, **kw))
    add("k_ln_kernel", gen_ln, 256)
    add("k_qkv_kernel", gen_gemm, 16*12, lds=2*LDS_BUF, nwg=16*12, ncb=12, nks=1, Kw=576,
        A=('ws', WS_XN, D, S*D*2), B=('wqkv', 3*D, D*3*D*2), epi=make_epi_bf16(WS_QKV, 3*D, S*3*D*2))
    add("k_ffn1_kernel", gen_gemm, 16*32, lds=2*LDS_BUF, nwg=16*32, ncb=32, nks=1, Kw=576,
        A=('ws', WS_XN, D, S*D*2), B=('w1', F, D*F*2), epi=make_epi_bf16(WS_H, F, S*F*2, gelu=True))
    add("k_attn1_kernel", gen_attn1, 256, lds=ATT1_LDS)
    add("k_ffn2_kernel", gen_gemm, 16*4*4, lds=2*LDS_BUF, nwg=256, ncb=4, nks=4, Kw=1152,
        A=('ws', WS_H, F, S*F*2), B=('w2', D, F*D*2), epi=make_epi_f32())
    add("k_attn2_kernel", gen_attn2, 256, lds=ATT2_LDS)
    add("k_final_kernel", gen_gemm, 16*4, lds=2*LDS_BUF, nwg=64, ncb=4, nks=1, Kw=576,
        A=('ws', WS_O, D, S*D*2), B=('wo', D, D*D*2), epi=make_epi_final())
    hdr = open("cdna_kernels/" + KNAME + ".s.ref").read().split("; Override launch")[0]
    out = hdr + "\n".join(launches) + "\n"
    out += '.amdgcn_target "amdgcn-amd-amdhsa--gfx950"\n.text\n'
    out += a.text()
    out += '.section .rodata,"a"\n'
    for d in descs:
        out += ".p2align 6\n" + d
    return out

if __name__ == "__main__":
    txt = build()
    open("cdna_kernels/" + KNAME + ".s", "w").write(txt)
    print("written", len(txt))
```

```python
import sys
import struct
def fhex(x):
    return "0x%08x" % struct.unpack("<I", struct.pack("<f", x))[0]

KNAME = "recurrent_scan__linear_kernel_hedgehog__dense_activation_gelu__prompt"

ARG = dict(x=0, wqkv=8, wphi=16, wo=24, bx=32, w1=40, b1=48, w2=56, b2=64, out=72, dbg=80, ws=88)
WS_XN   = 0
WS_QKV  = 4 << 20
WS_H    = 16 << 20
WS_YP   = 48 << 20
WS_KV   = 80 << 20
WS_O    = 96 << 20
WS_SIZE = 268435456

S, D, F, H, DH = 2048, 576, 4608, 32, 18

DEBUG = False
class Asm:
    def __init__(self):
        self.lines = []
    def __call__(self, s):
        self.lines.append("    " + s)
    def label(self, s):
        self.lines.append(s + ":")
    def raw(self, s):
        self.lines.append(s)
    def text(self):
        return "\n".join(self.lines) + "\n"

HDR = [True]
def kernel_header(a, name):
    if not HDR[0]:
        return
    a.raw(f".globl {name}")
    a.raw(".p2align 8")
    a.raw(f".type {name},@function")
    a.label(name)

def kernel_desc(name, vgpr, sgpr=102, accum=None):
    if accum is None:
        accum = (vgpr + 3) // 4 * 4
    return f""".amdhsa_kernel {name}
  .amdhsa_next_free_vgpr {vgpr}
  .amdhsa_next_free_sgpr {sgpr}
  .amdhsa_accum_offset {accum}
  .amdhsa_group_segment_fixed_size 0
  .amdhsa_kernarg_size 96
  .amdhsa_user_sgpr_count 2
  .amdhsa_user_sgpr_kernarg_segment_ptr 1
  .amdhsa_system_sgpr_workgroup_id_x 1
.end_amdhsa_kernel
"""

def load_ptr(a, sreg, arg):
    a(f"s_load_dwordx2 s[{sreg}:{sreg+1}], s[0:1], {ARG[arg]}")

def make_srd(a, d, sptr, nbytes, off=0):
    if off:
        a(f"s_add_u32 s{d}, s{sptr}, {off}")
        a(f"s_addc_u32 s{d+1}, s{sptr+1}, 0")
    else:
        a(f"s_mov_b32 s{d}, s{sptr}")
        a(f"s_mov_b32 s{d+1}, s{sptr+1}")
    a(f"s_mov_b32 s{d+2}, {nbytes}")
    a(f"s_mov_b32 s{d+3}, 0x00020000")

def rne_bf16(a, v, tmp):
    a(f"v_cvt_pk_bf16_f32 v{tmp}, v{v}, v{v}")
    a(f"v_lshlrev_b32 v{v}, 16, v{tmp}")

def gen_ln(a, name):
    kernel_header(a, name)
    a("s_cmp_ge_u32 s2, 256")
    a(f"s_cbranch_scc1 L_{name}_end")
    load_ptr(a, 4, 'x')
    load_ptr(a, 6, 'ws')
    a("v_lshrrev_b32 v1, 5, v0")
    a("v_and_b32 v2, 31, v0")
    a("s_lshl_b32 s3, s2, 3")
    a("v_add_u32 v1, s3, v1               ; row")
    a("v_mul_u32_u24 v1, 1152, v1")
    a("v_mul_u32_u24 v2, 36, v2")
    a("v_add_u32 v1, v1, v2")
    a("s_waitcnt lgkmcnt(0)")
    make_srd(a, 8, 4, S*D*2)
    make_srd(a, 12, 6, S*D*2, WS_XN)
    a("buffer_load_dwordx4 v[4:7], v1, s[8:11], 0 offen")
    a("buffer_load_dwordx4 v[8:11], v1, s[8:11], 0 offen offset:16")
    a("buffer_load_dword v12, v1, s[8:11], 0 offen offset:32")
    a("s_waitcnt vmcnt(0)")
    for i in range(9):
        a(f"v_lshlrev_b32 v{16+2*i}, 16, v{4+i}")
        a(f"v_and_b32 v{17+2*i}, 0xffff0000, v{4+i}")
    a("v_add_f32 v40, v16, v17")
    for i in range(2, 18):
        a(f"v_add_f32 v40, v40, v{16+i}")
    def reduce32(v):
        for off in ("0x041F", "0x081F", "0x101F", "0x201F", "0x401F"):
            a(f"ds_swizzle_b32 v41, v{v} offset:{off}")
            a("s_waitcnt lgkmcnt(0)")
            a(f"v_add_f32 v{v}, v{v}, v41")
    reduce32(40)
    a("v_mul_f32 v40, 0x3ae38e39, v40")
    a("v_sub_f32 v42, v16, v40")
    a("v_mul_f32 v43, v42, v42")
    for i in range(1, 18):
        a(f"v_sub_f32 v42, v{16+i}, v40")
        a(f"v_fmac_f32 v43, v42, v42")
    reduce32(43)
    a("v_mul_f32 v43, 0x3ae38e39, v43      ; var")
    rne_bf16(a, 40, 44)
    rne_bf16(a, 43, 44)
    a("v_add_f32 v43, 0x3727c5ac, v43      ; + 1e-5")
    rne_bf16(a, 43, 44)
    a("v_sqrt_f32 v43, v43")
    a("s_nop 0")
    rne_bf16(a, 43, 44)
    a("v_rcp_f32 v45, v43")
    for i in range(18):
        a(f"v_sub_f32 v{16+i}, v{16+i}, v40")
    for i in range(9):
        a(f"v_cvt_pk_bf16_f32 v44, v{16+2*i}, v{17+2*i}")
        a(f"v_lshlrev_b32 v{16+2*i}, 16, v44")
        a(f"v_and_b32 v{17+2*i}, 0xffff0000, v44")
    for i in range(18):
        a(f"v_mul_f32 v{16+i}, v{16+i}, v45")
    for i in range(9):
        a(f"v_cvt_pk_bf16_f32 v{4+i}, v{16+2*i}, v{17+2*i}")
    a("buffer_store_dwordx4 v[4:7], v1, s[12:15], 0 offen")
    a("buffer_store_dwordx4 v[8:11], v1, s[12:15], 0 offen offset:16")
    a("buffer_store_dword v12, v1, s[12:15], 0 offen offset:32")
    a.label(f"L_{name}_end")
    a("s_endpgm")
    return kernel_desc(name, 48)

if __name__ == "__main__":
    pass

BN = 144
NT = BN // 16
LDS_BLK = 8*288 + 128
LDS_BUF = 8 * LDS_BLK
def ldsP(k):
    return (k >> 3) * LDS_BLK + (k & 7) * 288

def gen_gemm(a, name, *, nwg, ncb, nks, Kw, A, B, epi, BMw=2):
    MT = BMw
    BM = 64 * MT
    nst = Kw // 64
    L = f"L_{name}"
    kernel_header(a, name)
    a(f"s_cmp_ge_u32 s2, {nwg}")
    a(f"s_cbranch_scc1 {L}_end")
    load_ptr(a, 4, A[0])
    load_ptr(a, 6, B[0])
    load_ptr(a, 16, 'ws')
    nrb = S // BM
    import math
    lg = int(math.log2(nrb))
    a(f"s_and_b32 s20, s2, {nrb-1}          ; rb")
    a(f"s_lshr_b32 s21, s2, {lg}")
    if nks > 1:
        lc = int(math.log2(ncb))
        a(f"s_and_b32 s22, s21, {ncb-1}     ; cb")
        a(f"s_lshr_b32 s23, s21, {lc}       ; ks")
    else:
        a("s_mov_b32 s22, s21")
        a("s_mov_b32 s23, 0")
    a("v_and_b32 v1, 63, v0               ; lane")
    a("v_lshrrev_b32 v2, 6, v0            ; wave")
    a("v_and_b32 v3, 15, v1               ; l&15")
    a("v_lshrrev_b32 v4, 4, v1            ; l>>4")
    lda2 = A[2] * 2
    a(f"s_mul_i32 s24, s20, {BM}")
    a(f"v_mul_u32_u24 v5, {16*MT}, v2")
    a("v_add_u32 v5, v5, v3")
    a("v_add_u32 v5, s24, v5              ; row (i=0)")
    for i in range(MT):
        a(f"v_add_u32 v6, {16*i}, v5")
        a(f"s_mov_b32 s25, {lda2}")
        a(f"v_mul_lo_u32 v6, v6, s25")
        a(f"v_lshlrev_b32 v7, 4, v4")
        a(f"v_add_u32 v{10+i}, v6, v7")
    ldb2 = B[1] * 2
    for i in range(9):
        a(f"v_add_u32 v6, {i*256}, v0")
        a("s_mov_b32 s25, 0x71c71c8            ; ceil(2^32/36)")
        a("v_mul_hi_u32 v7, v6, s25           ; row")
        a("v_mul_u32_u24 v8, 36, v7")
        a("v_sub_u32 v8, v6, v8               ; col8")
        a(f"s_mov_b32 s25, {ldb2}")
        a("v_mul_lo_u32 v9, v7, s25")
        a(f"v_lshl_add_u32 v{12+i}, v8, 3, v9")
        a("v_lshrrev_b32 v9, 3, v7")
        a(f"v_mul_u32_u24 v9, {LDS_BLK}, v9")
        a("v_and_b32 v6, 7, v7")
        a("v_mul_u32_u24 v6, 288, v6")
        a("v_add_u32 v9, v9, v6")
        a(f"v_lshl_add_u32 v{21+i}, v8, 3, v9")
    a(f"v_mul_u32_u24 v30, {LDS_BLK}, v4")
    a("v_lshrrev_b32 v6, 2, v3")
    a("v_mul_u32_u24 v6, 288, v6")
    a("v_add_u32 v30, v30, v6")
    a("v_and_b32 v6, 3, v1")
    a("v_lshl_add_u32 v30, v6, 3, v30")
    a("s_waitcnt lgkmcnt(0)")
    make_srd(a, 8, 4, A[3], A[1])
    a(f"s_mul_i32 s26, s22, {BN*2}")
    a("s_add_u32 s12, s6, s26")
    a("s_addc_u32 s13, s7, 0")
    a(f"s_sub_u32 s14, {B[2]}, s26")
    a("s_mov_b32 s15, 0x00020000")
    a(f"s_mul_i32 s27, s23, {Kw*2}")
    a(f"s_mul_i32 s28, s23, {Kw*ldb2}")
    AF = lambda st, i, kk: 32 + st*(8*MT) + (i*2+kk)*4
    BS = lambda st, j: 80 + st*18 + 2*j
    BF = lambda j: 116 + j*4
    AC = lambda i, j: 156 + (i*9+j)*4
    for i in range(MT):
        for j in range(NT):
            for r in range(4):
                a(f"v_mov_b32 v{AC(i,j)+r}, 0")
    NA = 2*MT
    def loadB(s):
        a(f"s_add_u32 s29, s28, {64*s*ldb2}")
        for j in range(9):
            a(f"buffer_load_dwordx2 v[{BS(s&1,j)}:{BS(s&1,j)+1}], v{12+j}, s[12:15], s29 offen")
    def loadA(s):
        st = s % 3
        a(f"s_add_u32 s30, s27, {128*s}")
        for i in range(MT):
            for kk in range(2):
                a(f"buffer_load_dwordx4 v[{AF(st,i,kk)}:{AF(st,i,kk)+3}], v{10+i}, s[8:11], s30 offen offset:{64*kk}")
    def writeB(s):
        buf = (s & 1) * LDS_BUF
        for j in range(9):
            a(f"ds_write_b64 v{21+j}, v[{BS(s&1,j)}:{BS(s&1,j)+1}] offset:{buf}")
    loadB(0); loadA(0); loadB(1); loadA(1)
    a(f"s_waitcnt vmcnt({NA+9+NA})")
    writeB(0)
    a("s_waitcnt lgkmcnt(0)")
    a("s_barrier")
    for s in range(nst):
        n2 = s + 2 < nst
        n1 = s + 1 < nst
        if n2:
            loadB(s+2)
            loadA(s+2)
        after_A = (9+NA if n1 else 0) + (9+NA if n2 else 0)
        buf = (s & 1) * LDS_BUF
        for kk in range(2):
            for j in range(NT):
                for hh in range(2):
                    off = buf + kk*4*LDS_BLK + hh*4*288 + 32*j
                    a(f"ds_read_b64_tr_b16 v[{BF(j)+2*hh}:{BF(j)+2*hh+1}], v30 offset:{off}")
            if kk == 0:
                a(f"s_waitcnt vmcnt({after_A})")
            a("s_waitcnt lgkmcnt(0)")
            for j in range(NT):
                for i in range(MT):
                    a(f"v_mfma_f32_16x16x32_bf16 v[{AC(i,j)}:{AC(i,j)+3}], v[{BF(j)}:{BF(j)+3}], v[{AF(s%3,i,kk)}:{AF(s%3,i,kk)+3}], v[{AC(i,j)}:{AC(i,j)+3}]")
        if n1:
            a(f"s_waitcnt vmcnt({NA + (9+NA if n2 else 0)})")
            writeB(s+1)
            a("s_waitcnt lgkmcnt(0)")
            a("s_barrier")
    a("s_nop 15")
    a("s_nop 3")
    epi(a, dict(AC=AC, MT=MT, BM=BM))
    a.label(f"{L}_end")
    a("s_endpgm")
    return kernel_desc(name, 232)

def epi_coords(a, ldc_bytes, ecol_bytes, c):
    a(f"s_mul_i32 s31, s22, {BN*ecol_bytes}")
    a(f"v_mul_u32_u24 v7, {4*ecol_bytes}, v4")
    a("v_add_u32 v7, s31, v7")
    a(f"s_mov_b32 s25, {ldc_bytes}")
    for i in range(c['MT']):
        a(f"v_add_u32 v6, {16*i}, v5")
        a(f"v_mul_lo_u32 v6, v6, s25")
        a(f"v_add_u32 v{60+i}, v6, v7")

def make_epi_bf16(ws_off, ldc, nbytes, gelu=False):
    def epi(a, c):
        AC = c['AC']
        make_srd(a, 32, 16, nbytes, ws_off)
        epi_coords(a, ldc*2, 2, c)
        if gelu:
            load_ptr(a, 36, 'b1')
            a(f"s_mul_i32 s31, s22, {BN*2}")
            a("v_lshlrev_b32 v8, 3, v4")
            a("s_waitcnt lgkmcnt(0)")
            make_srd(a, 40, 36, F*2)
            for j in range(NT):
                a(f"buffer_load_dwordx2 v[{64+2*j}:{65+2*j}], v8, s[40:43], s31 offen offset:{32*j}")
            a("s_waitcnt vmcnt(0)")
            a(f"s_mov_b32 s44, {fhex(-2*0.7978845608028654*1.4426950408889634)}")
            a(f"s_mov_b32 s45, {fhex(-2*0.7978845608028654*1.4426950408889634*0.044715)}")
        for i in range(c['MT']):
            for j in range(NT):
                r0 = AC(i, j)
                if gelu:
                    a(f"v_lshlrev_b32 v84, 16, v{64+2*j}")
                    a(f"v_and_b32 v85, 0xffff0000, v{64+2*j}")
                    a(f"v_lshlrev_b32 v86, 16, v{65+2*j}")
                    a(f"v_and_b32 v87, 0xffff0000, v{65+2*j}")
                    for r in range(4):
                        a(f"v_add_f32 v{r0+r}, v{r0+r}, v{84+r}")
                    for r in range(4):
                        a(f"v_mul_f32 v{88+r}, v{r0+r}, v{r0+r}")
                    for r in range(4):
                        a(f"v_mov_b32 v{92+r}, s44")
                    for r in range(4):
                        a(f"v_fmac_f32 v{92+r}, s45, v{88+r}")
                    for r in range(4):
                        a(f"v_mul_f32 v{92+r}, v{92+r}, v{r0+r}")
                    for r in range(4):
                        a(f"v_exp_f32 v{92+r}, v{92+r}")
                    for r in range(4):
                        a(f"v_add_f32 v{92+r}, 1.0, v{92+r}")
                    for r in range(4):
                        a(f"v_rcp_f32 v{92+r}, v{92+r}")
                    for r in range(4):
                        a(f"v_mul_f32 v{r0+r}, v{r0+r}, v{92+r}")
                a(f"v_cvt_pk_bf16_f32 v{r0}, v{r0}, v{r0+1}")
                a(f"v_cvt_pk_bf16_f32 v{r0+1}, v{r0+2}, v{r0+3}")
                a(f"buffer_store_dwordx2 v[{r0}:{r0+1}], v{60+i}, s[32:35], 0 offen offset:{32*j}")
    return epi

def make_epi_f32():
    def epi(a, c):
        AC = c['AC']
        a(f"s_mul_i32 s31, s23, {S*D*4}")
        a("s_add_u32 s36, s16, s31")
        a("s_addc_u32 s37, s17, 0")
        make_srd(a, 32, 36, S*D*4, WS_YP)
        epi_coords(a, D*4, 4, c)
        for i in range(c['MT']):
            for j in range(NT):
                r0 = AC(i, j)
                a(f"buffer_store_dwordx4 v[{r0}:{r0+3}], v{60+i}, s[32:35], 0 offen offset:{64*j}")
    return epi

def make_epi_final():
    def epi(a, c):
        AC = c['AC']
        load_ptr(a, 36, 'x')
        load_ptr(a, 38, 'out')
        load_ptr(a, 40, 'b2')
        make_srd(a, 32, 16, 4*S*D*4, WS_YP)
        epi_coords(a, D*2, 2, c)
        a(f"s_mul_i32 s31, s22, {BN*2}")
        a("v_lshlrev_b32 v8, 3, v4")
        a("s_waitcnt lgkmcnt(0)")
        make_srd(a, 44, 36, S*D*2)
        make_srd(a, 48, 38, S*D*2)
        make_srd(a, 52, 40, D*2)
        for j in range(NT):
            a(f"buffer_load_dwordx2 v[{64+2*j}:{65+2*j}], v8, s[52:55], s31 offen offset:{32*j}")
        for i in range(c['MT']):
            a(f"v_lshlrev_b32 v62, 1, v{60+i}      ; f32 offset")
            for j in range(NT):
                r0 = AC(i, j)
                for ks in range(4):
                    a(f"s_mov_b32 s56, {ks*S*D*4}")
                    a(f"buffer_load_dwordx4 v[{84+4*ks}:{87+4*ks}], v62, s[32:35], s56 offen offset:{64*j}")
                a(f"buffer_load_dwordx2 v[100:101], v{60+i}, s[44:47], 0 offen offset:{32*j}")
                a("s_waitcnt vmcnt(0)")
                for r in range(4):
                    a(f"v_add_f32 v{84+r}, v{84+r}, v{88+r}")
                    a(f"v_add_f32 v{92+r}, v{92+r}, v{96+r}")
                    a(f"v_add_f32 v{84+r}, v{84+r}, v{92+r}")
                a(f"v_lshlrev_b32 v88, 16, v{64+2*j}")
                a(f"v_and_b32 v89, 0xffff0000, v{64+2*j}")
                a(f"v_lshlrev_b32 v90, 16, v{65+2*j}")
                a(f"v_and_b32 v91, 0xffff0000, v{65+2*j}")
                for r in range(4):
                    a(f"v_add_f32 v{84+r}, v{84+r}, v{88+r}     ; y")
                for r in range(4):
                    a(f"v_mul_f32 v{88+r}, 0xbfb8aa3b, v{84+r}")
                for r in range(4):
                    a(f"v_exp_f32 v{88+r}, v{88+r}")
                for r in range(4):
                    a(f"v_add_f32 v{88+r}, 1.0, v{88+r}")
                for r in range(4):
                    a(f"v_rcp_f32 v{88+r}, v{88+r}")
                for r in range(4):
                    a(f"v_mul_f32 v{84+r}, v{84+r}, v{88+r}     ; g")
                a("v_lshlrev_b32 v88, 16, v100")
                a("v_and_b32 v89, 0xffff0000, v100")
                a("v_lshlrev_b32 v90, 16, v101")
                a("v_and_b32 v91, 0xffff0000, v101")
                for r in range(4):
                    a(f"v_fma_f32 v{r0+r}, v{r0+r}, v{84+r}, v{88+r}")
                a(f"v_cvt_pk_bf16_f32 v{r0}, v{r0}, v{r0+1}")
                a(f"v_cvt_pk_bf16_f32 v{r0+1}, v{r0+2}, v{r0+3}")
                a(f"buffer_store_dwordx2 v[{r0}:{r0+1}], v{60+i}, s[48:51], 0 offen offset:{32*j}")
    return epi


LOG2E = 1.4426950408889634

def emit_wphi_to_lds(a, sw=4):
    make_srd(a, 8, sw, H*DH*DH*2)
    a("s_mul_i32 s24, s20, 648")
    a("v_cmp_gt_u32 vcc, 162, v0")
    a("s_and_saveexec_b64 s[12:13], vcc")
    a("v_lshlrev_b32 v1, 2, v0")
    a("buffer_load_dword v2, v1, s[8:11], s24 offen")
    a("v_lshlrev_b32 v3, 1, v0            ; e = 2t")
    a("s_mov_b32 s25, 0xe38e38f           ; ceil(2^32/18)")
    a("v_mul_hi_u32 v4, v3, s25           ; d")
    a("v_mul_u32_u24 v5, 18, v4")
    a("v_sub_u32 v5, v3, v5               ; f")
    a("v_mul_u32_u24 v4, 80, v4")
    a("v_lshl_add_u32 v4, v5, 2, v4")
    a("s_waitcnt vmcnt(0)")
    a("v_lshlrev_b32 v6, 16, v2")
    a("v_and_b32 v7, 0xffff0000, v2")
    a("ds_write_b64 v4, v[6:7]")
    a("s_mov_b64 exec, s[12:13]")

def emit_featmap(a, vin, vp, vphi, vt):
    X = vt + 20
    for f in range(18):
        a(f"v_mov_b32 v{vp+f}, 0")
    for d in range(18):
        a(f"ds_read_b128 v[{vt}:{vt+3}], v9 offset:{80*d}")
        a(f"ds_read_b128 v[{vt+4}:{vt+7}], v9 offset:{80*d+16}")
        a(f"ds_read_b128 v[{vt+8}:{vt+11}], v9 offset:{80*d+32}")
        a(f"ds_read_b128 v[{vt+12}:{vt+15}], v9 offset:{80*d+48}")
        a(f"ds_read_b64 v[{vt+16}:{vt+17}], v9 offset:{80*d+64}")
        if d & 1:
            a(f"v_and_b32 v{X}, 0xffff0000, v{vin+d//2}")
        else:
            a(f"v_lshlrev_b32 v{X}, 16, v{vin+d//2}")
        a("s_waitcnt lgkmcnt(0)")
        for f in range(18):
            a(f"v_fmac_f32 v{vp+f}, v{X}, v{vt+f}")
    for f in range(18):
        a(f"v_cvt_pk_bf16_f32 v{vt}, v{vp+f}, v{vp+f}")
        a(f"v_lshlrev_b32 v{vp+f}, 16, v{vt}")
    a(f"v_max3_f32 v{vt}, v{vp}, v{vp+1}, v{vp+2}")
    a(f"v_min3_f32 v{vt+1}, v{vp}, v{vp+1}, v{vp+2}")
    for f in range(3, 17, 2):
        a(f"v_max3_f32 v{vt}, v{vt}, v{vp+f}, v{vp+f+1}")
        a(f"v_min3_f32 v{vt+1}, v{vt+1}, v{vp+f}, v{vp+f+1}")
    a(f"v_max_f32 v{vt}, v{vt}, v{vp+17}")
    a(f"v_min_f32 v{vt+1}, v{vt+1}, v{vp+17}")
    for f in range(18):
        a(f"v_sub_f32 v{vphi+f}, v{vp+f}, v{vt}")
        a(f"v_sub_f32 v{vphi+18+f}, v{vt+1}, v{vp+f}")
    for f in range(36):
        a(f"v_mul_f32 v{vphi+f}, {fhex(LOG2E)}, v{vphi+f}")
    for f in range(36):
        a(f"v_exp_f32 v{vphi+f}, v{vphi+f}")
    for half in range(2):
        b = vphi + 18*half
        a(f"v_add_f32 v{vt+2+half}, v{b}, v{b+1}")
        for f in range(2, 18):
            a(f"v_add_f32 v{vt+2+half}, v{vt+2+half}, v{b+f}")
        a(f"v_rcp_f32 v{vt+2+half}, v{vt+2+half}")
    a("s_nop 0")
    for half in range(2):
        b = vphi + 18*half
        for f in range(18):
            a(f"v_mul_f32 v{b+f}, v{b+f}, v{vt+2+half}")
    for f in range(36):
        a(f"v_cvt_pk_bf16_f32 v{vt}, v{vphi+f}, v{vphi+f}")
        a(f"v_lshlrev_b32 v{vphi+f}, 16, v{vt}")

PH_STR = 528
PH_OFF = 2048
VT_OFF = PH_OFF + 48*PH_STR
ATT1_LDS = VT_OFF + 32*PH_STR

def gen_attn1(a, name):
    L = f"L_{name}"
    kernel_header(a, name)
    a("s_cmp_ge_u32 s2, 256")
    a(f"s_cbranch_scc1 {L}_end")
    load_ptr(a, 4, 'wphi')
    load_ptr(a, 6, 'ws')
    a("s_and_b32 s20, s2, 31              ; head")
    a("s_lshr_b32 s21, s2, 5              ; chunk")
    a("s_waitcnt lgkmcnt(0)")
    emit_wphi_to_lds(a)
    make_srd(a, 12, 6, S*3*D*2, WS_QKV)
    a("s_lshl_b32 s24, s21, 8")
    a("v_add_u32 v1, s24, v0")
    a("s_mov_b32 s25, 3456")
    a("v_mul_lo_u32 v1, v1, s25")
    a("s_mul_i32 s26, s20, 36")
    a("s_add_u32 s26, s26, 1152")
    for i in range(9):
        a(f"buffer_load_dword v{16+i}, v1, s[12:15], s26 offen offset:{4*i}")
    for i in range(9):
        a(f"buffer_load_dword v{26+i}, v1, s[12:15], s26 offen offset:{1152+4*i}")
    a("v_mov_b32 v9, 0")
    a("s_waitcnt vmcnt(0) lgkmcnt(0)")
    a("s_barrier")
    emit_featmap(a, 16, 40, 60, 100)
    if DEBUG:
        make_srd(a, 16, 6, 256*256*144, 128<<20)
        a("s_mul_i32 s24, s2, 256*144")
        a("v_mul_u32_u24 v1, 144, v0")
        for f in range(36):
            a(f"buffer_store_dword v{60+f}, v1, s[16:19], s24 offen offset:{4*f}")
    a("v_lshlrev_b32 v1, 1, v0")
    for f in range(36):
        a(f"ds_write_b16_d16_hi v1, v{60+f} offset:{PH_OFF + f*PH_STR}")
    for i in range(9):
        a(f"ds_write_b16 v1, v{26+i} offset:{VT_OFF + (2*i)*PH_STR}")
        a(f"ds_write_b16_d16_hi v1, v{26+i} offset:{VT_OFF + (2*i+1)*PH_STR}")
    a("v_mov_b32 v2, 0x3f80")
    a(f"ds_write_b16 v1, v2 offset:{VT_OFF + 18*PH_STR}")
    a("s_waitcnt lgkmcnt(0)")
    a("s_barrier")
    a("v_and_b32 v1, 63, v0")
    a("v_lshrrev_b32 v2, 6, v0")
    a("v_and_b32 v3, 15, v1")
    a("v_lshrrev_b32 v4, 4, v1")
    a(f"v_mul_u32_u24 v5, {PH_STR}, v3")
    a("v_lshlrev_b32 v6, 7, v2            ; w*128 bytes")
    a("v_add_u32 v5, v5, v6")
    a("v_lshl_add_u32 v5, v4, 4, v5")
    for r in range(24):
        a(f"v_mov_b32 v{40+r}, 0")
    for kk in range(2):
        for ft in range(3):
            a(f"ds_read_b128 v[{64+4*ft}:{67+4*ft}], v5 offset:{PH_OFF + 16*ft*PH_STR + 64*kk}")
        for dt in range(2):
            a(f"ds_read_b128 v[{76+4*dt}:{79+4*dt}], v5 offset:{VT_OFF + 16*dt*PH_STR + 64*kk}")
        a("s_waitcnt lgkmcnt(0)")
        for ft in range(3):
            for dt in range(2):
                ac = 40 + (ft*2+dt)*4
                a(f"v_mfma_f32_16x16x32_bf16 v[{ac}:{ac+3}], v[{64+4*ft}:{67+4*ft}], v[{76+4*dt}:{79+4*dt}], v[{ac}:{ac+3}]")
    a("s_nop 15")
    a("s_barrier")
    a("v_lshlrev_b32 v5, 4, v1")
    a("v_mul_u32_u24 v6, 6144, v2")
    a("v_add_u32 v5, v5, v6")
    for tl in range(6):
        a(f"ds_write_b128 v5, v[{40+4*tl}:{43+4*tl}] offset:{PH_OFF + 1024*tl}")
    a("s_waitcnt lgkmcnt(0)")
    a("s_barrier")
    a("v_lshlrev_b32 v5, 2, v0")
    for q in range(6):
        for w in range(4):
            a(f"ds_read_b32 v{64+q*4+w}, v5 offset:{PH_OFF + 6144*w + 1024*q}")
    a("s_waitcnt lgkmcnt(0)")
    for q in range(6):
        a(f"v_add_f32 v{64+q*4}, v{64+q*4}, v{65+q*4}")
        a(f"v_add_f32 v{66+q*4}, v{66+q*4}, v{67+q*4}")
        a(f"v_add_f32 v{64+q*4}, v{64+q*4}, v{66+q*4}")
    make_srd(a, 16, 6, 256*6144, WS_KV)
    a("s_mul_i32 s24, s2, 6144")
    a("s_add_u32 s25, s24, 4096")
    for q in range(6):
        a(f"buffer_store_dword v{64+q*4}, v5, s[16:19], s{24 if q<4 else 25} offen offset:{1024*(q%4)}")
    a.label(f"{L}_end")
    a("s_endpgm")
    return kernel_desc(name, 128)

KV_OFF = 2048
ATT2_LDS = KV_OFF + 36*80

def gen_attn2(a, name):
    L = f"L_{name}"
    kernel_header(a, name)
    a("s_cmp_ge_u32 s2, 256")
    a(f"s_cbranch_scc1 {L}_end")
    load_ptr(a, 4, 'wphi')
    load_ptr(a, 6, 'ws')
    a("s_and_b32 s20, s2, 31              ; head")
    a("s_lshr_b32 s21, s2, 5              ; chunk")
    a("s_waitcnt lgkmcnt(0)")
    emit_wphi_to_lds(a)
    make_srd(a, 16, 6, 256*6144, WS_KV)
    a("v_lshlrev_b32 v1, 2, v0")
    for c in range(8):
        a(f"s_mul_i32 s24, s20, 6144")
        a(f"s_add_u32 s24, s24, {c*32*6144}")
        a("s_add_u32 s25, s24, 4096")
        for q in range(6):
            a(f"buffer_load_dword v{16+c*6+q}, v1, s[16:19], s{24 if q<4 else 25} offen offset:{1024*(q%4)}")
    a("s_waitcnt vmcnt(0)")
    for q in range(6):
        for c in range(1, 8):
            a(f"v_add_f32 v{16+q}, v{16+q}, v{16+c*6+q}")
        a(f"v_cvt_pk_bf16_f32 v2, v{16+q}, v{16+q}")
        a(f"v_lshlrev_b32 v{16+q}, 16, v2")
    a("v_lshrrev_b32 v2, 2, v0            ; lane")
    a("v_and_b32 v3, 3, v0                ; r")
    a("v_lshrrev_b32 v4, 4, v2")
    a("v_lshl_add_u32 v4, v4, 2, v3       ; f0 = 4*(lane>>4)+r")
    a("v_and_b32 v5, 15, v2               ; d0")
    for q in range(6):
        ft, dt = q // 2, q % 2
        a(f"v_add_u32 v6, {16*ft}, v4")
        a(f"v_add_u32 v7, {16*dt}, v5")
        a("v_cmp_gt_u32 vcc, 36, v6")
        a("v_cmp_gt_u32 s[12:13], 19, v7")
        a("s_and_b64 vcc, vcc, s[12:13]")
        a("s_and_saveexec_b64 s[12:13], vcc")
        a("v_mul_u32_u24 v6, 80, v6")
        a("v_lshl_add_u32 v6, v7, 2, v6")
        a(f"ds_write_b32 v6, v{16+q} offset:{KV_OFF}")
        a("s_mov_b64 exec, s[12:13]")
    make_srd(a, 12, 6, S*3*D*2, WS_QKV)
    a("s_lshl_b32 s24, s21, 8")
    a("v_add_u32 v1, s24, v0")
    a("s_mov_b32 s25, 3456")
    a("v_mul_lo_u32 v2, v1, s25")
    a("s_mul_i32 s26, s20, 36")
    for i in range(9):
        a(f"buffer_load_dword v{16+i}, v2, s[12:15], s26 offen offset:{4*i}")
    a("v_mov_b32 v9, 0")
    a("s_waitcnt vmcnt(0) lgkmcnt(0)")
    a("s_barrier")
    emit_featmap(a, 16, 40, 60, 100)
    for d in range(19):
        a(f"v_mov_b32 v{40+d}, 0")
    for f in range(36):
        o = KV_OFF + 80*f
        a(f"ds_read_b128 v[100:103], v9 offset:{o}")
        a(f"ds_read_b128 v[104:107], v9 offset:{o+16}")
        a(f"ds_read_b128 v[108:111], v9 offset:{o+32}")
        a(f"ds_read_b128 v[112:115], v9 offset:{o+48}")
        a(f"ds_read_b96 v[116:118], v9 offset:{o+64}")
        a("s_waitcnt lgkmcnt(0)")
        for d in range(19):
            a(f"v_fmac_f32 v{40+d}, v{60+f}, v{100+d}")
    a(f"v_add_f32 v58, {fhex(1e-6)}, v58")
    a("v_rcp_f32 v58, v58")
    a("s_nop 0")
    for d in range(18):
        a(f"v_mul_f32 v{40+d}, v{40+d}, v58")
    for i in range(9):
        a(f"v_cvt_pk_bf16_f32 v{16+i}, v{40+2*i}, v{41+2*i}")
    make_srd(a, 16, 6, S*D*2, WS_O)
    a("s_mov_b32 s25, 1152")
    a("v_mul_lo_u32 v2, v1, s25")
    for i in range(9):
        a(f"buffer_store_dword v{16+i}, v2, s[16:19], s26 offen offset:{4*i}")
    a.label(f"{L}_end")
    a("s_endpgm")
    return kernel_desc(name, 128)

def build():
    a = Asm()
    launches = []
    descs = []
    def add(name, gen, grid, lds=0, **kw):
        launches.append(f"; @launch kernel={name} grid=({grid},1,1) block=(256,1,1) lds={lds}")
        descs.append(gen(a, name, **kw))
    def add2(name, grid1, lds, A_, B_):
        gridB = B_[2]
        launches.append(f"; @launch kernel={name} grid=({grid1+gridB},1,1) block=(256,1,1) lds={lds}")
        kernel_header(a, name)
        a(f"s_cmp_ge_u32 s2, {grid1}")
        a(f"s_cbranch_scc1 L_{name}_roleB")
        HDR[0] = False
        A_[0](a, A_[1], **A_[3])
        a.label(f"L_{name}_roleB")
        a(f"s_sub_u32 s2, s2, {grid1}")
        B_[0](a, B_[1], **B_[3])
        HDR[0] = True
        descs.append(kernel_desc(name, 232))
    add("k_ln_kernel", gen_ln, 256)
    add("k_qkv_kernel", gen_gemm, 16*12, lds=2*LDS_BUF, nwg=16*12, ncb=12, nks=1, Kw=576,
        A=('ws', WS_XN, D, S*D*2), B=('wqkv', 3*D, D*3*D*2), epi=make_epi_bf16(WS_QKV, 3*D, S*3*D*2))
    add2("k_l3_kernel", 256, max(ATT1_LDS, 2*LDS_BUF), (gen_attn1, "k_attn1", 256, {}),
        (gen_gemm, "k_ffn1", 16*32, dict(nwg=16*32, ncb=32, nks=1, Kw=576,
        A=('ws', WS_XN, D, S*D*2), B=('w1', F, D*F*2), epi=make_epi_bf16(WS_H, F, S*F*2, gelu=True))))
    add2("k_l4_kernel", 256, 2*LDS_BUF, (gen_attn2, "k_attn2", 256, {}),
        (gen_gemm, "k_ffn2", 256, dict(nwg=256, ncb=4, nks=4, Kw=1152,
        A=('ws', WS_H, F, S*F*2), B=('w2', D, F*D*2), epi=make_epi_f32())))
    add("k_final_kernel", gen_gemm, 32*4, lds=2*LDS_BUF, nwg=128, ncb=4, nks=1, Kw=576, BMw=1,
        A=('ws', WS_O, D, S*D*2), B=('wo', D, D*D*2), epi=make_epi_final())
    hdr = open("cdna_kernels/" + KNAME + ".s.ref").read().split("; Override launch")[0]
    out = hdr + "\n".join(launches) + "\n"
    out += '.amdgcn_target "amdgcn-amd-amdhsa--gfx950"\n.text\n'
    out += a.text()
    out += '.section .rodata,"a"\n'
    for d in descs:
        out += ".p2align 6\n" + d
    return out

if __name__ == "__main__":
    txt = build()
    open("cdna_kernels/" + KNAME + ".s", "w").write(txt)
    print("written", len(txt))
```
